```python
import torch

def _softmax(x, axis=-1):
    return torch.softmax(x, dim=axis)
def _gelu(x):
    return torch.nn.functional.gelu(x, approximate="tanh")
def _silu(x):
    return torch.nn.functional.silu(x)
def _sigmoid(x):
    return torch.sigmoid(x)
def _layernorm(x, axis=-1, eps=1e-5):
    m = x.mean(dim=axis, keepdim=True)
    v = x.var(dim=axis, keepdim=True, unbiased=False)
    return (x - m) / torch.sqrt(v + eps)
def _scatter_add(tgt, idx, src, axis=0):
    return tgt.clone().index_add_(axis, idx, src)
def _segment_sum(src, seg, n):
    out = torch.zeros((n,) + src.shape[1:], dtype=src.dtype)
    return out.index_add_(0, seg, src)
def _pad(x, pw):
    flat = tuple(v for pair in reversed(pw) for v in pair)
    return torch.nn.functional.pad(x, flat)

kernel_name = 'gated_mix__mha_block__mha_block__prompt'

def setup_inputs():

    _w = (lambda a: (lambda t: t.to(torch.bfloat16) if t.is_floating_point() else t)(torch.as_tensor(a)))
    def _A_setup():
        B, S, D, H = 1, 2048, 512, 32
        return {
            "x": _w((lambda *s: torch.randn(*s, dtype=torch.bfloat16) * 0.05)(B, S, D)),
            "wqkv": _w((lambda *s: torch.randn(*s, dtype=torch.bfloat16) * 0.8)(D, 3 * D)),
            "wo": _w((lambda *s: torch.randn(*s, dtype=torch.bfloat16) * 0.05)(D, D)),
        }
    _A_in = _A_setup()

    def _B_setup():
        B, S, D, H = 1, 2048, 512, 32
        return {
            "x": _w((lambda *s: torch.randn(*s, dtype=torch.bfloat16) * 0.05)(B, S, D)),
            "wqkv": _w((lambda *s: torch.randn(*s, dtype=torch.bfloat16) * 0.8)(D, 3 * D)),
            "wo": _w((lambda *s: torch.randn(*s, dtype=torch.bfloat16) * 0.05)(D, D)),
        }
    _B_in = _B_setup()

    return {
        "A_x": _A_in["x"],
        "A_wqkv": _A_in["wqkv"],
        "A_wo": _A_in["wo"],
        "B_x": _B_in["x"],
        "B_wqkv": _B_in["wqkv"],
        "B_wo": _B_in["wo"],
        "gate_w": _w((lambda *s: torch.randn(*s, dtype=torch.bfloat16) * 0.05)(512) * 16.0),
    }

def reference(A_x, A_wqkv, A_wo, B_x, B_wqkv, B_wo, gate_w):
    def _A_ref(x, wqkv, wo):
        B, S, D = x.shape
        H = 32
        Dh = D // H
        qkv = (lambda x, *d: x.permute(*d))((x @ wqkv).reshape(B, S, 3, H, Dh), 2, 0, 3, 1, 4)
        q, k, v = qkv[0], qkv[1], qkv[2]
        scores = torch.einsum("bhqd,bhkd->bhqk", q, k) * (Dh ** -0.5)
        p = _softmax(scores, axis=-1)
        o = torch.einsum("bhqk,bhkd->bhqd", p, v)
        return (lambda x, *d: x.permute(*d))(o, 0, 2, 1, 3).reshape(B, S, D) @ wo

    def _B_ref(x, wqkv, wo):
        B, S, D = x.shape
        H = 32
        Dh = D // H
        qkv = (lambda x, *d: x.permute(*d))((x @ wqkv).reshape(B, S, 3, H, Dh), 2, 0, 3, 1, 4)
        q, k, v = qkv[0], qkv[1], qkv[2]
        scores = torch.einsum("bhqd,bhkd->bhqk", q, k) * (Dh ** -0.5)
        p = _softmax(scores, axis=-1)
        o = torch.einsum("bhqk,bhkd->bhqd", p, v)
        return (lambda x, *d: x.permute(*d))(o, 0, 2, 1, 3).reshape(B, S, D) @ wo

    x = A_x
    g = _sigmoid((x * gate_w).sum(-1, keepdims=True))
    a = _A_ref(x, A_wqkv, A_wo)
    b = _B_ref(x, B_wqkv, B_wo)
    return g * a + (1 - g) * b
```

```python
class Asm:
    def __init__(self):
        self.lines = []
    def __call__(self, s):
        for l in s.strip("\n").split("\n"):
            self.lines.append("  " + l.strip() if l.strip() and not l.strip().endswith(":") else l.strip())
    def label(self, name):
        self.lines.append(name + ":")
    def comment(self, s):
        self.lines.append("  ; " + s)
    def raw(self, s):
        self.lines.append(s)
    def text(self):
        return "\n".join(self.lines) + "\n"

def vr(base, n=1):
    return f"v{base}" if n == 1 else f"v[{base}:{base+n-1}]"
def sr(base, n=1):
    return f"s{base}" if n == 1 else f"s[{base}:{base+n-1}]"
def ar(base, n=1):
    return f"a{base}" if n == 1 else f"a[{base}:{base+n-1}]"

class RegAlloc:
    def __init__(self, start=0, limit=256):
        self.next = start
        self.limit = limit
        self.names = {}
    def alloc(self, name, n=1, align=1):
        b = (self.next + align - 1) // align * align
        self.next = b + n
        assert self.next <= self.limit, f"out of registers at {name}: {self.next}"
        self.names[name] = (b, n)
        return b

def kernel_header(name):
    return f""".globl {name}
.p2align 8
.type {name},@function
{name}:
"""
def kernel_desc(name, vgpr, sgpr=102, accum=None):
    if accum is None:
        accum = (vgpr + 3) // 4 * 4
    return f""".amdhsa_kernel {name}
  .amdhsa_next_free_vgpr {vgpr}
  .amdhsa_next_free_sgpr {sgpr}
  .amdhsa_accum_offset {accum}
  .amdhsa_group_segment_fixed_size 0
  .amdhsa_kernarg_size 80
  .amdhsa_user_sgpr_count 2
  .amdhsa_user_sgpr_kernarg_segment_ptr 1
  .amdhsa_system_sgpr_workgroup_id_x 1
.end_amdhsa_kernel
"""
```

```python
from asmlib import *
MB = 1 << 20
QF_OFF = 0
KF_OFF = 4 * MB
VF_OFF = 8 * MB
OF_OFF = 12 * MB
G_OFF = 16 * MB
WS_BYTES = 268435456
LOG2E = 1.4426950408889634
QSCALE = 0.25 * LOG2E

import struct
def f2u(f):
    return struct.unpack("<I", struct.pack("<f", f))[0]

def decode_ids(A, s_xcd, s_slot, s_p, s_h, s_c):
    A(f"""
s_and_b32 s{s_xcd}, s2, 7
s_lshr_b32 s{s_slot}, s2, 3
s_lshr_b32 s{s_p}, s{s_xcd}, 2
s_and_b32 s{s_h}, s{s_xcd}, 3
s_lshl_b32 s{s_h}, s{s_h}, 3
s_lshr_b32 s{s_c}, s{s_slot}, 2
s_add_u32 s{s_h}, s{s_h}, s{s_c}
s_and_b32 s{s_c}, s{s_slot}, 3
""")

def make_srd(A, d, lo, hi, nbytes):
    A(f"""
s_mov_b32 s{d}, s{lo}
s_and_b32 s{d+1}, s{hi}, 0xffff
s_mov_b32 s{d+2}, {nbytes}
s_mov_b32 s{d+3}, 0x20000
""")
```

```python
from common import *

def gen_k1(name="qkv_kernel"):
    A = Asm()
    A.raw(kernel_header(name))
    W_OFF = 0
    GATE_OFF = 48 * 1024
    XR_OFF = 49 * 1024
    LDS = XR_OFF + 8 * 3 * 4096
    SX, SW, SWS, SG = 4, 8, 12, 16
    s_w, s_p, s_h, s_c = 20, 21, 22, 23
    s_t0, s_t1, s_t2, s_t3 = 36, 37, 38, 39
    s_xrow = 40
    s_ring = 41
    s_gflag = 42
    s_so = 43
    R = RegAlloc(0)
    v_tid = R.alloc("tid")
    v_lane = R.alloc("lane")
    v_t0 = R.alloc("t0"); v_t1 = R.alloc("t1"); v_t2 = R.alloc("t2")
    v_woff = R.alloc("woff")
    v_xo = [R.alloc("xoe"), R.alloc("xoo")]
    v_xa = [R.alloc("xa0"), R.alloc("xa1")]
    v_wa = R.alloc("wa")
    v_ga = R.alloc("ga")
    v_st = R.alloc("st"); v_stv = R.alloc("stv")
    ACC = R.alloc("acc", 48, 4)
    ACG = R.alloc("accg", 16, 4)
    XF = R.alloc("xf", 32, 4)
    WF = R.alloc("wf", 48, 4)
    GF = R.alloc("gf", 8, 4)
    PK = R.alloc("pk", 8, 4)
    nv = R.next
    acc = lambda rg, m: ACC + (rg * 3 + m) * 4
    xf = lambda b, rgp, t: XF + ((b * 2 + rgp) * 2 + t) * 4
    wf = lambda b, t, m: WF + ((b * 2 + t) * 3 + m) * 4

    A(f"""
s_cmp_ge_u32 s2, 256
s_cbranch_scc1 {name}_end
s_load_dwordx2 s[24:25], s[0:1], 0
s_load_dwordx2 s[26:27], s[0:1], 8
s_load_dwordx2 s[30:31], s[0:1], 32
s_load_dwordx2 s[32:33], s[0:1], 48
s_load_dwordx2 s[34:35], s[0:1], 72
v_lshrrev_b32 v{v_t0}, 6, v0
v_and_b32 v{v_lane}, 63, v0
""")
    decode_ids(A, s_t0, s_t1, s_p, s_h, s_c)
    A(f"v_readfirstlane_b32 s{s_w}, v{v_t0}")
    A(f"""
v_and_b32 v{v_t0}, 0x18, v{v_lane}
v_lshrrev_b32 v{v_t1}, 5, v{v_lane}
v_lshl_add_u32 v{v_t0}, v{v_t1}, 2, v{v_t0}
v_bfe_u32 v{v_t1}, v{v_lane}, 1, 2
v_add_u32 v{v_t0}, v{v_t0}, v{v_t1}
v_mul_u32_u24 v{v_woff}, 3072, v{v_t0}
v_and_b32 v{v_t1}, 1, v{v_lane}
v_lshl_add_u32 v{v_woff}, v{v_t1}, 4, v{v_woff}
""")
    A(f"""
v_lshrrev_b32 v{v_t0}, 3, v{v_lane}
v_lshlrev_b32 v{v_t0}, 10, v{v_t0}
v_and_b32 v{v_t1}, 7, v{v_lane}
v_lshrrev_b32 v{v_t2}, 4, v{v_lane}
v_xor_b32 v{v_t1}, v{v_t1}, v{v_t2}
v_lshl_add_u32 v{v_xo[0]}, v{v_t1}, 4, v{v_t0}
v_xor_b32 v{v_t1}, 4, v{v_t1}
v_lshl_add_u32 v{v_xo[1]}, v{v_t1}, 4, v{v_t0}
""")
    A(f"""
s_mul_i32 s{s_ring}, s{s_w}, {3*4096}
s_add_u32 s{s_ring}, s{s_ring}, {XR_OFF}
v_and_b32 v{v_t0}, 15, v{v_lane}
v_lshlrev_b32 v{v_t0}, 7, v{v_t0}
v_add_u32 v{v_t0}, s{s_ring}, v{v_t0}
v_lshrrev_b32 v{v_t1}, 4, v{v_lane}
v_bfe_u32 v{v_t2}, v{v_lane}, 1, 3
v_xor_b32 v{v_t1}, v{v_t1}, v{v_t2}
v_lshl_add_u32 v{v_xa[0]}, v{v_t1}, 4, v{v_t0}
v_xor_b32 v{v_t1}, 4, v{v_t1}
v_lshl_add_u32 v{v_xa[1]}, v{v_t1}, 4, v{v_t0}
v_lshlrev_b32 v{v_wa}, 3, v{v_lane}
v_lshrrev_b32 v{v_ga}, 4, v{v_lane}
v_lshlrev_b32 v{v_ga}, 4, v{v_ga}
""")
    A(f"""
v_lshlrev_b32 v{v_st}, 4, v{v_lane}
v_bfe_u32 v{v_t0}, v{v_lane}, 4, 1
v_lshlrev_b32 v{v_t0}, 9, v{v_t0}
v_lshrrev_b32 v{v_t1}, 5, v{v_lane}
v_lshl_add_u32 v{v_t0}, v{v_t1}, 8, v{v_t0}
v_and_b32 v{v_t1}, 15, v{v_lane}
v_lshl_add_u32 v{v_stv}, v{v_t1}, 4, v{v_t0}
""")
    for i in range(48):
        A(f"v_mov_b32 v{ACC+i}, 0")
    for i in range(16):
        A(f"v_mov_b32 v{ACG+i}, 0")
    A("s_waitcnt lgkmcnt(0)")
    A(f"""
s_cmp_eq_u32 s{s_p}, 0
s_cselect_b32 s{s_t2}, s26, s30
s_cselect_b32 s{s_t3}, s27, s31
""")
    make_srd(A, SX, 24, 25, 2048 * 1024)
    make_srd(A, SW, s_t2, s_t3, 512 * 3072)
    make_srd(A, SWS, 34, 35, WS_BYTES)
    make_srd(A, SG, 32, 33, 1024)
    A(f"""
s_cmp_eq_u32 s{s_h}, s{s_w}
s_cselect_b32 s{s_gflag}, 1, 0
s_cmp_eq_u32 s{s_p}, 0
s_cselect_b32 s{s_gflag}, s{s_gflag}, 0
""")
    A(f"""
s_lshl_b32 s{s_xrow}, s{s_c}, 3
s_add_u32 s{s_xrow}, s{s_xrow}, s{s_w}
s_lshl_b32 s{s_xrow}, s{s_xrow}, 16
""")
    A(f"s_mul_i32 s{s_t0}, s{s_w}, 6")
    A(f"s_lshl_b32 s{s_t3}, s{s_h}, 5")
    for i in range(6):
        A(f"""
s_add_u32 s{s_t1}, s{s_t0}, {i}
s_lshl_b32 m0, s{s_t1}, 10
s_and_b32 s{s_t2}, s{s_t1}, 15
s_mul_i32 s{s_t2}, s{s_t2}, {32*3072}
s_lshr_b32 s{s_t1}, s{s_t1}, 4
s_lshl_b32 s{s_t1}, s{s_t1}, 10
s_add_u32 s{s_t2}, s{s_t2}, s{s_t1}
s_add_u32 s{s_t2}, s{s_t2}, s{s_t3}
buffer_load_dwordx4 v{v_woff}, s[{SW}:{SW+3}], s{s_t2} offen lds
""")
    A(f"""
s_mov_b32 m0, {GATE_OFF}
s_mov_b32 s{s_t2}, 0
buffer_load_dwordx4 v{v_st}, s[{SG}:{SG+3}], s{s_t2} offen lds
""")
    def xdma(u):
        kc, rb = u >> 1, u & 1
        slot = u % 3
        for i in range(4):
            A(f"""
s_add_u32 m0, s{s_ring}, {slot*4096 + i*1024}
s_add_u32 s{s_so}, s{s_xrow}, {(32*rb + 8*i)*1024 + kc*128}
buffer_load_dwordx4 v{v_xo[i&1]}, s[{SX}:{SX+3}], s{s_so} offen lds
""")
    def xread(u):
        b = u & 1
        slot = u % 3
        for t in range(2):
            for rgp in range(2):
                A(f"ds_read_b128 v[{xf(b,rgp,t)}:{xf(b,rgp,t)+3}], v{v_xa[t]} offset:{slot*4096 + rgp*2048}")
    def wread(kc):
        b = kc & 1
        for t in range(2):
            s = 2 * kc + t
            for m in range(3):
                for jh in range(2):
                    r = wf(b, t, m) + 2 * jh
                    A(f"ds_read_b64_tr_b16 v[{r}:{r+1}], v{v_wa} offset:{W_OFF + (m*16+s)*1024 + jh*512}")
    def gread(kc):
        for t in range(2):
            s = 2 * kc + t
            A(f"ds_read_b128 v[{GF+4*t}:{GF+4*t+3}], v{v_ga} offset:{GATE_OFF + s*64}")
    for u in range(3):
        xdma(u)
    A("s_waitcnt vmcnt(8)")
    A("s_barrier")
    wread(0)
    xread(0)
    NU = 16
    for u in range(NU):
        kc, rb = u >> 1, u & 1
        b = u & 1
        wb = kc & 1
        lbl = f"{name}_g{u}"
        if rb == 0:
            A(f"s_cmp_eq_u32 s{s_gflag}, 0")
            A(f"s_cbranch_scc1 {lbl}_skipr")
            gread(kc)
            A.label(f"{lbl}_skipr")
        A("s_waitcnt lgkmcnt(0)")
        if u + 3 < NU:
            xdma(u + 3)
        if u + 1 < NU:
            inflight = sum(4 for uu in (u + 2, u + 3) if uu < NU)
            A(f"s_waitcnt vmcnt({inflight})")
            xread(u + 1)
            if (u + 1) & 1 == 0:
                wread((u + 1) >> 1)
        for t in range(2):
            for rgp in range(2):
                rg = 2 * rb + rgp
                X = xf(b, rgp, t)
                for m in range(3):
                    Wf = wf(wb, t, m)
                    D = acc(rg, m)
                    if m < 2:
                        A(f"v_mfma_f32_16x16x32_bf16 v[{D}:{D+3}], v[{Wf}:{Wf+3}], v[{X}:{X+3}], v[{D}:{D+3}]")
                    else:
                        A(f"v_mfma_f32_16x16x32_bf16 v[{D}:{D+3}], v[{X}:{X+3}], v[{Wf}:{Wf+3}], v[{D}:{D+3}]")
        A(f"s_cmp_eq_u32 s{s_gflag}, 0")
        A(f"s_cbranch_scc1 {lbl}_skipm")
        for t in range(2):
            for rgp in range(2):
                rg = 2 * rb + rgp
                X = xf(b, rgp, t)
                D = ACG + rg * 4
                A(f"v_mfma_f32_16x16x32_bf16 v[{D}:{D+3}], v[{GF+4*t}:{GF+4*t+3}], v[{X}:{X+3}], v[{D}:{D+3}]")
        A.label(f"{lbl}_skipm")
    A("s_nop 7")
    A("s_nop 7")
    A(f"""
s_lshl_b32 s{s_t0}, s{s_p}, 5
s_add_u32 s{s_t0}, s{s_t0}, s{s_h}
s_lshl_b32 s{s_t0}, s{s_t0}, 6
s_lshl_b32 s{s_t1}, s{s_c}, 4
s_add_u32 s{s_t0}, s{s_t0}, s{s_t1}
s_lshl_b32 s{s_t1}, s{s_w}, 1
s_add_u32 s{s_t0}, s{s_t0}, s{s_t1}
s_lshl_b32 s{s_t0}, s{s_t0}, 10
s_mov_b32 s{s_t3}, {hex(f2u(QSCALE))}
""")
    offs = [QF_OFF, KF_OFF, VF_OFF]
    pkset = 0
    for rb in range(2):
        for m in range(3):
            a, bb = acc(2 * rb, m), acc(2 * rb + 1, m)
            P = PK + 4 * pkset
            pkset ^= 1
            if m == 0:
                for i in range(4):
                    A(f"v_mul_f32 v{a+i}, s{s_t3}, v{a+i}")
                    A(f"v_mul_f32 v{bb+i}, s{s_t3}, v{bb+i}")
            A(f"""
v_cvt_pk_bf16_f32 v{P}, v{a}, v{a+1}
v_cvt_pk_bf16_f32 v{P+1}, v{a+2}, v{a+3}
v_cvt_pk_bf16_f32 v{P+2}, v{bb}, v{bb+1}
v_cvt_pk_bf16_f32 v{P+3}, v{bb+2}, v{bb+3}
s_add_u32 s{s_t1}, s{s_t0}, {offs[m] + rb*1024}
s_nop 1
v_permlane16_swap_b32 v{P}, v{P+2}
v_permlane16_swap_b32 v{P+1}, v{P+3}
""")
            va = v_stv if m == 2 else v_st
            A(f"buffer_store_dwordx4 v[{P}:{P+3}], v{va}, s[{SWS}:{SWS+3}], s{s_t1} offen")
            A("s_nop 1")
    A(f"s_cmp_eq_u32 s{s_gflag}, 0")
    A(f"s_cbranch_scc1 {name}_end")
    A(f"""
s_mov_b32 s{s_t3}, {hex(f2u(-LOG2E))}
v_and_b32 v{v_t0}, 15, v{v_lane}
v_lshlrev_b32 v{v_t0}, 2, v{v_t0}
s_lshr_b32 s{s_t0}, s{s_xrow}, 8
s_add_u32 s{s_t0}, s{s_t0}, {G_OFF}
v_cmp_gt_u32 vcc, 16, v{v_lane}
s_and_saveexec_b64 s[44:45], vcc
""")
    for rg in range(4):
        D = ACG + rg * 4
        A(f"""
v_cvt_pk_bf16_f32 v{v_t1}, v{D}, v{D}
v_lshlrev_b32 v{v_t1}, 16, v{v_t1}
v_mul_f32 v{v_t1}, s{s_t3}, v{v_t1}
v_exp_f32 v{v_t1}, v{v_t1}
s_nop 0
v_add_f32 v{v_t1}, 1.0, v{v_t1}
v_rcp_f32 v{v_t1}, v{v_t1}
s_nop 0
v_cvt_pk_bf16_f32 v{v_t1}, v{v_t1}, v{v_t1}
v_lshlrev_b32 v{PK+rg}, 16, v{v_t1}
buffer_store_dword v{PK+rg}, v{v_t0}, s[{SWS}:{SWS+3}], s{s_t0} offen offset:{rg*64}
""")
    A.label(f"{name}_end")
    A("s_endpgm")
    return A.text(), kernel_desc(name, nv, 64), LDS
```

```python
from common import *

def gen_k2(name="attn_kernel"):
    A = Asm()
    A.raw(kernel_header(name))
    K_OFF = 0
    V_OFF = 65536
    LDS = 131072
    SWS = 4
    s_w, s_p, s_h, s_c = 20, 21, 22, 23
    s_t0, s_t1, s_t2, s_t3 = 36, 37, 38, 39
    s_ph = 40
    s_pass = 41
    EXM = 44
    R = RegAlloc(0)
    v_tid = R.alloc("tid")
    v_lane = R.alloc("lane")
    v_t0 = R.alloc("t0"); v_t1 = R.alloc("t1"); v_t2 = R.alloc("t2")
    v_l16 = R.alloc("l16")
    v_va = R.alloc("va")
    v_idx = R.alloc("idx")
    Q = R.alloc("q", 8, 4)
    KB = R.alloc("kb", 8, 4)
    VB = R.alloc("vb", 16, 4)
    C = R.alloc("c", 32, 4)
    S = R.alloc("s", 32, 4)
    O = R.alloc("o", 32, 4)
    PK = R.alloc("pk", 8, 4)
    nv = R.next
    q = lambda x: Q + 4 * x
    kb = lambda t: KB + 4 * (t & 1)
    vb = lambda t, f: VB + 8 * (t & 1) + 4 * f
    cc = lambda x: C + 16 * x
    ss = lambda x: S + 16 * x
    oo = lambda x: O + 16 * x

    A(f"""
s_cmp_ge_u32 s2, 256
s_cbranch_scc1 {name}_end
s_load_dwordx2 s[34:35], s[0:1], 72
v_lshrrev_b32 v{v_t0}, 6, v0
v_and_b32 v{v_lane}, 63, v0
""")
    decode_ids(A, s_t0, s_t1, s_p, s_h, s_c)
    A(f"""
v_readfirstlane_b32 s{s_w}, v{v_t0}
v_lshlrev_b32 v{v_l16}, 4, v{v_lane}
s_lshl_b32 s{s_ph}, s{s_p}, 5
s_add_u32 s{s_ph}, s{s_ph}, s{s_h}
s_mov_b32 s{EXM}, 0xffff
s_mov_b32 s{EXM+1}, 0xffff
s_mov_b32 s{s_pass}, 0
""")
    A(f"""
v_lshrrev_b32 v{v_t0}, 5, v{v_lane}
v_lshlrev_b32 v{v_t0}, 8, v{v_t0}
v_and_b32 v{v_t1}, 15, v{v_lane}
v_lshl_add_u32 v{v_va}, v{v_t1}, 4, v{v_t0}
v_add_u32 v{v_va}, {V_OFF}, v{v_va}
v_mov_b32 v{v_idx}, 0xdddddddd
""")
    A(f"""
v_and_b32 v{v_t0}, 31, v{v_lane}
v_mov_b32 v{v_t1}, 0x3f803f80
v_cmp_eq_u32 vcc, 16, v{v_t0}
s_nop 1
v_cndmask_b32 v{v_t0}, 0, v{v_t1}, vcc
""")
    for i in range(16):
        A(f"v_mov_b32 v{VB+i}, v{v_t0}")
    A("s_waitcnt lgkmcnt(0)")
    make_srd(A, SWS, 34, 35, WS_BYTES)
    A(f"""
s_lshl_b32 s{s_t0}, s{s_ph}, 6
s_lshl_b32 s{s_t1}, s{s_c}, 4
s_add_u32 s{s_t1}, s{s_t0}, s{s_t1}
s_lshl_b32 s{s_t2}, s{s_w}, 1
s_add_u32 s{s_t1}, s{s_t1}, s{s_t2}
s_lshl_b32 s{s_t1}, s{s_t1}, 10
buffer_load_dwordx4 v[{q(0)}:{q(0)+3}], v{v_l16}, s[{SWS}:{SWS+3}], s{s_t1} offen
buffer_load_dwordx4 v[{q(1)}:{q(1)+3}], v{v_l16}, s[{SWS}:{SWS+3}], s{s_t1} offen offset:1024
""")
    A(f"""
s_add_u32 s{s_t0}, s{s_t0}, s{s_w}
s_lshl_b32 s{s_t0}, s{s_t0}, 10
s_lshl_b32 s{s_t2}, s{s_w}, 10
""")
    for i in range(8):
        A(f"""
s_add_u32 m0, s{s_t2}, {K_OFF + i*8192}
s_add_u32 s{s_t1}, s{s_t0}, {KF_OFF + i*8192}
buffer_load_dwordx4 v{v_l16}, s[{SWS}:{SWS+3}], s{s_t1} offen lds
s_add_u32 m0, s{s_t2}, {V_OFF + i*8192}
s_add_u32 s{s_t1}, s{s_t0}, {VF_OFF + i*8192}
buffer_load_dwordx4 v{v_l16}, s[{SWS}:{SWS+3}], s{s_t1} offen lds
""")
    A("s_waitcnt vmcnt(14)")
    A("s_barrier")
    def kread(t):
        A(f"ds_read_b128 v[{kb(t)}:{kb(t)+3}], v{v_l16} offset:{K_OFF + t*1024}")
    def vread(t):
        A(f"s_mov_b64 exec, s[{EXM}:{EXM+1}]")
        for f in range(2):
            A(f"ds_read_b128 v[{vb(t,f)}:{vb(t,f)+3}], v{v_va} offset:{t*1024 + f*512}")
        A("s_mov_b64 exec, -1")
    def MS(x, t, czero=False):
        c = "0" if czero else f"v[{cc(x)}:{cc(x)+15}]"
        A(f"v_mfma_f32_32x32x16_bf16 v[{ss(x)}:{ss(x)+15}], v[{kb(t)}:{kb(t)+3}], v[{q(x)}:{q(x)+3}], {c}")
    def E(x, i):
        A(f"v_exp_f32 v{ss(x)+i}, v{ss(x)+i}")
    def PV(x, t, f):
        A(f"v_smfmac_f32_32x32x32_bf16 v[{oo(x)}:{oo(x)+15}], v[{vb(t,f)}:{vb(t,f)+3}], v[{ss(x)+8*f}:{ss(x)+8*f+7}], v{v_idx}")
    def setC_from_max(x, vm):
        A(f"""
v_mov_b32 v{v_t1}, v{vm}
s_nop 1
v_permlane32_swap_b32 v{vm}, v{v_t1}
s_nop 1
v_max_f32 v{vm}, v{vm}, v{v_t1}
v_sub_f32 v{vm}, 0, v{vm}
""")
        for i in range(16):
            A(f"v_mov_b32 v{cc(x)+i}, v{vm}")
    def maxtree(x, vm, init):
        b = ss(x)
        if init:
            A(f"v_max3_f32 v{vm}, v{b}, v{b+1}, v{b+2}")
            rest = list(range(3, 16))
        else:
            rest = list(range(0, 16))
        while len(rest) >= 2:
            A(f"v_max3_f32 v{vm}, v{vm}, v{b+rest[0]}, v{b+rest[1]}")
            rest = rest[2:]
        if rest:
            A(f"v_max_f32 v{vm}, v{vm}, v{b+rest[0]}")
    kread(0)
    A("s_waitcnt lgkmcnt(0)")
    MS(0, 0, True)
    MS(1, 0, True)
    A("s_nop 15")
    A("s_nop 3")
    maxtree(0, v_t0, True)
    maxtree(1, v_t2, True)
    setC_from_max(0, v_t0)
    setC_from_max(1, v_t2)
    A.label(f"{name}_main")
    for i in range(32):
        A(f"v_mov_b32 v{O+i}, 0")
    kread(0)
    kread(1)
    vread(0)
    A("s_waitcnt lgkmcnt(0)")
    MS(0, 0)
    A("s_nop 7")
    A("s_nop 3")
    NT = 64
    for t in range(NT):
        MS(1, t)
        for i in range(10): E(0, i)
        PV(0, t, 0)
        for i in range(10, 16): E(0, i)
        if t == 6:
            A(f"s_cmp_lg_u32 s{s_pass}, 0")
            A(f"s_cbranch_scc1 {name}_nobar")
            A("s_waitcnt vmcnt(0)")
            A("s_barrier")
            A.label(f"{name}_nobar")
        n = 0
        if t + 2 < NT:
            kread(t + 2); n += 1
        if t + 1 < NT:
            vread(t + 1); n += 4
        while n < 2:
            A("s_nop 0"); n += 1
        PV(0, t, 1)
        if t + 1 < NT:
            MS(0, t + 1)
        for i in range(10): E(1, i)
        PV(1, t, 0)
        for i in range(10, 16): E(1, i)
        A("s_waitcnt lgkmcnt(0)")
        A("s_nop 0")
        PV(1, t, 1)
    A("s_nop 15")
    A("s_nop 3")
    A(f"s_mov_b32 s{s_t3}, {hex(f2u(2.0**60))}")
    for x in range(2):
        vl = v_t0 if x == 0 else v_t2
        A(f"""
v_mov_b32 v{vl}, v{oo(x)+8}
v_mov_b32 v{v_t1}, v{oo(x)+8}
s_nop 1
v_permlane32_swap_b32 v{vl}, v{v_t1}
s_nop 1
""")
    A(f"""
v_cmp_nle_f32 vcc, v{v_t0}, s{s_t3}
""".replace(f"v{v_t0}, s{s_t3}", f"s{s_t3}, s{s_t3}").replace("v_cmp_nle_f32 vcc, ", "; "))
    A(f"""
v_mov_b32 v{v_t1}, s{s_t3}
v_cmp_nle_f32 vcc, v{v_t0}, v{v_t1}
s_mov_b64 s[46:47], vcc
v_cmp_nle_f32 vcc, v{v_t2}, v{v_t1}
s_nop 1
s_or_b64 s[46:47], s[46:47], vcc
s_cmp_eq_u64 s[46:47], 0
s_cbranch_scc1 {name}_fin
s_cmp_lg_u32 s{s_pass}, 0
s_cbranch_scc1 {name}_fin
""")
    A(f"""
s_mov_b32 s{s_pass}, 1
v_mov_b32 v{v_t0}, 0xff800000
v_mov_b32 v{v_t2}, 0xff800000
v_mov_b32 v{PK}, v{v_l16}
s_mov_b32 s{s_t0}, 0
""")
    A.label(f"{name}_maxloop")
    A(f"""
ds_read_b128 v[{kb(0)}:{kb(0)+3}], v{PK} offset:{K_OFF}
v_add_u32 v{PK}, 1024, v{PK}
s_waitcnt lgkmcnt(0)
""")
    MS(0, 0, True)
    MS(1, 0, True)
    A("s_nop 15")
    A("s_nop 3")
    maxtree(0, v_t0, False)
    maxtree(1, v_t2, False)
    A(f"""
s_add_u32 s{s_t0}, s{s_t0}, 1
s_cmp_lt_u32 s{s_t0}, 64
s_cbranch_scc1 {name}_maxloop
""")
    setC_from_max(0, v_t0)
    setC_from_max(1, v_t2)
    A(f"s_branch {name}_main")
    A.label(f"{name}_fin")
    A(f"""
s_lshl_b32 s{s_t0}, s{s_p}, 6
s_lshl_b32 s{s_t1}, s{s_c}, 4
s_add_u32 s{s_t0}, s{s_t0}, s{s_t1}
s_lshl_b32 s{s_t1}, s{s_w}, 1
s_add_u32 s{s_t0}, s{s_t0}, s{s_t1}
s_lshl_b32 s{s_t0}, s{s_t0}, 5
s_add_u32 s{s_t0}, s{s_t0}, s{s_h}
s_lshl_b32 s{s_t0}, s{s_t0}, 10
s_add_u32 s{s_t0}, s{s_t0}, {OF_OFF}
v_rcp_f32 v{v_t0}, v{v_t0}
v_rcp_f32 v{v_t2}, v{v_t2}
s_nop 0
""")
    for x in range(2):
        vl = v_t0 if x == 0 else v_t2
        P = PK + 4 * x
        for i in range(8):
            A(f"v_mul_f32 v{oo(x)+i}, v{oo(x)+i}, v{vl}")
        for i in range(4):
            A(f"v_cvt_pk_bf16_f32 v{P+i}, v{oo(x)+2*i}, v{oo(x)+2*i+1}")
        A(f"buffer_store_dwordx4 v[{P}:{P+3}], v{v_l16}, s[{SWS}:{SWS+3}], s{s_t0} offen offset:{x*32768}" if False else
          f"s_add_u32 s{s_t1}, s{s_t0}, {x*32768}")
        A(f"buffer_store_dwordx4 v[{P}:{P+3}], v{v_l16}, s[{SWS}:{SWS+3}], s{s_t1} offen")
    A.label(f"{name}_end")
    A("s_endpgm")
    return A.text(), kernel_desc(name, nv, 64), LDS
```

```python
from common import *

def gen_k3(name="oproj_kernel"):
    A = Asm()
    A.raw(kernel_header(name))
    LDS = 131072
    SWS, SWO, SOUT = 4, 8, 12
    s_w = 20
    s_rb, s_cb = 21, 22
    s_rt, s_pp, s_kh = 23, 24, 25
    s_t0, s_t1, s_t2, s_t3 = 36, 37, 38, 39
    R = RegAlloc(0)
    v_tid = R.alloc("tid")
    v_lane = R.alloc("lane")
    v_t0 = R.alloc("t0"); v_t1 = R.alloc("t1"); v_t2 = R.alloc("t2")
    v_l16 = R.alloc("l16")
    v_wo = R.alloc("wo")
    v_wa = R.alloc("wa")
    v_g = R.alloc("g")
    v_ra = R.alloc("ra")
    v_oa = R.alloc("oa")
    OFR = R.alloc("of", 64, 4)
    WFR = R.alloc("wf", 16, 4)
    ACC = R.alloc("acc", 32, 4)
    T = R.alloc("t", 40, 4)
    nv = R.next
    A(f"""
s_cmp_ge_u32 s2, 256
s_cbranch_scc1 {name}_end
s_load_dwordx2 s[26:27], s[0:1], 16
s_load_dwordx2 s[28:29], s[0:1], 40
s_load_dwordx2 s[30:31], s[0:1], 56
s_load_dwordx2 s[34:35], s[0:1], 72
v_lshrrev_b32 v{v_t0}, 6, v0
v_and_b32 v{v_lane}, 63, v0
""")
    A(f"""
s_and_b32 s{s_t0}, s2, 7
s_lshr_b32 s{s_t1}, s2, 3
s_lshl_b32 s{s_rb}, s{s_t0}, 2
s_lshr_b32 s{s_t2}, s{s_t1}, 3
s_add_u32 s{s_rb}, s{s_rb}, s{s_t2}
s_and_b32 s{s_cb}, s{s_t1}, 7
v_readfirstlane_b32 s{s_w}, v{v_t0}
v_lshlrev_b32 v{v_l16}, 4, v{v_lane}
""")
    A(f"""
s_and_b32 s{s_rt}, s{s_w}, 1
s_bfe_u32 s{s_pp}, s{s_w}, 0x10001
s_lshr_b32 s{s_kh}, s{s_w}, 2
""")
    A(f"""
v_lshrrev_b32 v{v_t0}, 3, v{v_lane}
v_lshlrev_b32 v{v_t0}, 10, v{v_t0}
v_and_b32 v{v_t1}, 7, v{v_lane}
v_lshl_add_u32 v{v_wo}, v{v_t1}, 4, v{v_t0}
""")
    A(f"""
v_lshrrev_b32 v{v_t0}, 5, v{v_lane}
v_lshlrev_b32 v{v_t0}, 2, v{v_t0}
v_bfe_u32 v{v_t1}, v{v_lane}, 2, 2
v_add_u32 v{v_t0}, v{v_t0}, v{v_t1}
v_lshlrev_b32 v{v_t0}, 7, v{v_t0}
v_bfe_u32 v{v_t1}, v{v_lane}, 4, 1
v_lshl_add_u32 v{v_t0}, v{v_t1}, 5, v{v_t0}
v_and_b32 v{v_t1}, 3, v{v_lane}
v_lshl_add_u32 v{v_wa}, v{v_t1}, 3, v{v_t0}
s_lshl_b32 s{s_t0}, s{s_pp}, 16
s_lshl_b32 s{s_t1}, s{s_kh}, 15
s_add_u32 s{s_t0}, s{s_t0}, s{s_t1}
v_add_u32 v{v_wa}, s{s_t0}, v{v_wa}
""")
    for i in range(32):
        A(f"v_mov_b32 v{ACC+i}, 0")
    A("s_waitcnt lgkmcnt(0)")
    make_srd(A, SWS, 34, 35, WS_BYTES)
    make_srd(A, SOUT, 30, 31, 2048 * 1024)
    A(f"""
s_cmp_lt_u32 s{s_w}, 4
s_cselect_b32 s{s_t0}, s26, s28
s_cselect_b32 s{s_t1}, s27, s29
""")
    make_srd(A, SWO, s_t0, s_t1, 512 * 1024)
    A(f"""
s_lshl_b32 s{s_t0}, s{s_pp}, 6
s_lshl_b32 s{s_t1}, s{s_rb}, 1
s_add_u32 s{s_t0}, s{s_t0}, s{s_t1}
s_add_u32 s{s_t0}, s{s_t0}, s{s_rt}
s_lshl_b32 s{s_t0}, s{s_t0}, 15
s_lshl_b32 s{s_t1}, s{s_kh}, 14
s_add_u32 s{s_t0}, s{s_t0}, s{s_t1}
s_add_u32 s{s_t0}, s{s_t0}, {OF_OFF}
""")
    A(f"""
s_and_b32 s{s_t2}, s{s_w}, 3
s_lshl_b32 s{s_t3}, s{s_t2}, 17
s_lshl_b32 s{s_t1}, s{s_cb}, 7
s_add_u32 s{s_t3}, s{s_t3}, s{s_t1}
s_lshl_b32 s40, s{s_w}, 14
""")
    for i in range(16):
        A(f"""
s_add_u32 m0, s40, {i*1024}
s_add_u32 s41, s{s_t3}, {i*8192}
buffer_load_dwordx4 v{v_wo}, s[{SWO}:{SWO+3}], s41 offen lds
""")
    for s in range(16):
        if s % 4 == 0:
            A(f"s_add_u32 s41, s{s_t0}, {s*1024}")
        A(f"buffer_load_dwordx4 v[{OFR+4*s}:{OFR+4*s+3}], v{v_l16}, s[{SWS}:{SWS+3}], s41 offen offset:{(s%4)*1024}")
    A(f"""
v_lshrrev_b32 v{v_t0}, 3, v0
v_lshlrev_b32 v{v_t1}, 2, v{v_t0}
s_lshl_b32 s41, s{s_rb}, 8
s_add_u32 s41, s41, {G_OFF}
buffer_load_dword v{v_g}, v{v_t1}, s[{SWS}:{SWS+3}], s41 offen
""")
    A("s_waitcnt vmcnt(17)")
    A("s_barrier")
    def wread(s):
        b = s & 1
        for ct in range(2):
            for jh in range(2):
                r = WFR + b * 8 + ct * 4 + jh * 2
                A(f"ds_read_b64_tr_b16 v[{r}:{r+1}], v{v_wa} offset:{s*2048 + jh*1024 + ct*64}")
    wread(0)
    for s in range(16):
        if s + 1 < 16:
            wread(s + 1)
            A(f"s_waitcnt vmcnt({16 - s}) lgkmcnt(4)")
        else:
            A(f"s_waitcnt vmcnt({16 - s}) lgkmcnt(0)")
        b = s & 1
        for ct in range(2):
            r = WFR + b * 8 + ct * 4
            D = ACC + 16 * ct
            A(f"v_mfma_f32_32x32x16_bf16 v[{D}:{D+15}], v[{r}:{r+3}], v[{OFR+4*s}:{OFR+4*s+3}], v[{D}:{D+15}]")
    PITCH = 272
    A("s_nop 15")
    A("s_nop 3")
    A("s_barrier")
    A(f"""
s_lshl_b32 s{s_t0}, s{s_pp}, 1
s_add_u32 s{s_t0}, s{s_t0}, s{s_kh}
s_mul_i32 s{s_t0}, s{s_t0}, {64*PITCH}
s_mul_i32 s{s_t1}, s{s_rt}, {32*PITCH}
s_add_u32 s{s_t0}, s{s_t0}, s{s_t1}
v_and_b32 v{v_t0}, 31, v{v_lane}
v_mul_u32_u24 v{v_t0}, {PITCH}, v{v_t0}
v_lshrrev_b32 v{v_t1}, 5, v{v_lane}
v_lshl_add_u32 v{v_t0}, v{v_t1}, 4, v{v_t0}
v_add_u32 v{v_t0}, s{s_t0}, v{v_t0}
""")
    for ct in range(2):
        for g in range(4):
            r = ACC + 16 * ct + 4 * g
            A(f"ds_write_b128 v{v_t0}, v[{r}:{r+3}] offset:{ct*128 + g*32}")
    A("s_waitcnt lgkmcnt(0)")
    A("s_barrier")
    A(f"""
v_lshrrev_b32 v{v_t0}, 3, v0
v_and_b32 v{v_t1}, 7, v0
v_mul_u32_u24 v{v_ra}, {PITCH}, v{v_t0}
v_lshl_add_u32 v{v_ra}, v{v_t1}, 5, v{v_ra}
v_lshlrev_b32 v{v_oa}, 10, v{v_t0}
v_lshl_add_u32 v{v_oa}, v{v_t1}, 4, v{v_oa}
""")
    for part in range(4):
        for hf in range(2):
            r = T + part * 8 + hf * 4
            A(f"ds_read_b128 v[{r}:{r+3}], v{v_ra} offset:{part*64*PITCH + hf*16}")
    A("s_waitcnt lgkmcnt(0) vmcnt(0)")
    U = T + 32
    A(f"v_sub_f32 v{v_t2}, 1.0, v{v_g}")
    A(f"v_cvt_pk_bf16_f32 v{v_t2}, v{v_t2}, v{v_t2}")
    A(f"v_lshlrev_b32 v{v_t2}, 16, v{v_t2}")
    for i in range(8):
        A(f"v_add_f32 v{T+i}, v{T+i}, v{T+8+i}")
        A(f"v_add_f32 v{T+16+i}, v{T+16+i}, v{T+24+i}")
    for i in range(4):
        a0, a1 = T + 2*i, T + 2*i + 1
        b0, b1 = T + 16 + 2*i, T + 16 + 2*i + 1
        A(f"""
v_cvt_pk_bf16_f32 v{T+8}, v{a0}, v{a1}
v_cvt_pk_bf16_f32 v{T+9}, v{b0}, v{b1}
v_lshlrev_b32 v{a0}, 16, v{T+8}
v_and_b32 v{a1}, 0xffff0000, v{T+8}
v_lshlrev_b32 v{b0}, 16, v{T+9}
v_and_b32 v{b1}, 0xffff0000, v{T+9}
v_mul_f32 v{a0}, v{v_g}, v{a0}
v_mul_f32 v{a1}, v{v_g}, v{a1}
v_mul_f32 v{b0}, v{v_t2}, v{b0}
v_mul_f32 v{b1}, v{v_t2}, v{b1}
v_cvt_pk_bf16_f32 v{T+8}, v{a0}, v{a1}
v_cvt_pk_bf16_f32 v{T+9}, v{b0}, v{b1}
v_lshlrev_b32 v{a0}, 16, v{T+8}
v_and_b32 v{a1}, 0xffff0000, v{T+8}
v_lshlrev_b32 v{b0}, 16, v{T+9}
v_and_b32 v{b1}, 0xffff0000, v{T+9}
v_add_f32 v{a0}, v{a0}, v{b0}
v_add_f32 v{a1}, v{a1}, v{b1}
v_cvt_pk_bf16_f32 v{U+i}, v{a0}, v{a1}
""")
    A(f"""
s_lshl_b32 s{s_t0}, s{s_rb}, 16
s_lshl_b32 s{s_t1}, s{s_cb}, 7
s_add_u32 s{s_t0}, s{s_t0}, s{s_t1}
buffer_store_dwordx4 v[{U}:{U+3}], v{v_oa}, s[{SOUT}:{SOUT+3}], s{s_t0} offen
""")
    A.label(f"{name}_end")
    A("s_endpgm")
    return A.text(), kernel_desc(name, nv, 64), LDS
```

```python
import sys, os
sys.path.insert(0, os.path.dirname(__file__))
from common import *
from k1 import gen_k1
from k2 import gen_k2
from k3 import gen_k3
HDR = open("gated_mix__mha_block__mha_block__prompt.s.ref").read().split("\n")
hdr = [l for l in HDR if l.startswith(";") and "@launch" not in l and "Override launch" not in l and "grid=ceil" not in l]
def build(out):
    ks = [("qkv_kernel",) + gen_k1(), ("attn_kernel",) + gen_k2(), ("oproj_kernel",) + gen_k3()]
    s = "\n".join(hdr) + "\n"
    for n, t, d, lds in ks:
        s += f"; @launch kernel={n} grid=(256,1,1) block=(512,1,1) lds={lds}\n"
    s += '.amdgcn_target "amdgcn-amd-amdhsa--gfx950"\n.text\n'
    for n, t, d, lds in ks:
        s += t
    s += '.section .rodata,"a"\n'
    for n, t, d, lds in ks:
        s += ".p2align 6\n" + d
    open(out, "w").write(s)
if __name__ == "__main__":
    build(sys.argv[1] if len(sys.argv) > 1 else "gated_mix__mha_block__mha_block__prompt.s")
```
